```python
import torch

def _softmax(x, axis=-1):
    return torch.softmax(x, dim=axis)

def _gelu(x):
    return torch.nn.functional.gelu(x, approximate='tanh')

def _silu(x):
    return torch.nn.functional.silu(x)

def _sigmoid(x):
    return torch.sigmoid(x)

def _layernorm(x, axis=-1, eps=1e-05):
    m = x.mean(dim=axis, keepdim=True)
    v = x.var(dim=axis, keepdim=True, unbiased=False)
    return (x - m) / torch.sqrt(v + eps)

def _scatter_add(tgt, idx, src, axis=0):
    return tgt.clone().index_add_(axis, idx, src)

def _segment_sum(src, seg, n):
    out = torch.zeros((n,) + src.shape[1:], dtype=src.dtype)
    return out.index_add_(0, seg, src)

def _pad(x, pw):
    flat = tuple((v for pair in reversed(pw) for v in pair))
    return torch.nn.functional.pad(x, flat)
kernel_name = 'standalone__swin_window_attn__vision'

def setup_inputs():

    _w = lambda a: (lambda t: t.to(torch.bfloat16) if t.is_floating_point() else t)(torch.as_tensor(a))
    H = W = 384 // 7 * 7
    C, win = (384, 7)
    return {'x': _w((lambda *s: torch.randn(*s, dtype=torch.bfloat16) * 0.2)(1, H, W, C)), 'wqkv': _w((lambda *s: torch.randn(*s, dtype=torch.bfloat16) * 0.2)(C, 3 * C)), 'wo': _w((lambda *s: torch.randn(*s, dtype=torch.bfloat16) * 0.05)(C, C))}

def reference(x, wqkv, wo):
    B, H, W, C = x.shape
    win = 7
    nh, nw = (H // win, W // win)
    xw = (lambda x, *d: x.permute(*d))(x.reshape(B, nh, win, nw, win, C), 0, 1, 3, 2, 4, 5)
    xw = xw.reshape(B * nh * nw, win * win, C)
    qkv = xw @ wqkv
    q, k, v = (qkv[..., :C].clone(), qkv[..., C:2 * C].clone(), qkv[..., 2 * C:].clone())
    scale = C ** (-0.5)
    p = _softmax(torch.einsum('bqc,bkc->bqk', q, k) * scale, axis=-1)
    o = torch.einsum('bqk,bkc->bqc', p, v) @ wo
    o = (lambda x, *d: x.permute(*d))(o.reshape(B, nh, nw, win, win, C), 0, 1, 3, 2, 4, 5)
    return o.reshape(B, H, W, C)
```

```python
import re

REG_RE = re.compile(r'(?<![\w.])([vas])\[(\d+):(\d+)\]|(?<![\w.])([vas])(\d+)(?![\w\[])')
SPECIAL = ("vcc_lo", "vcc_hi", "vcc", "exec_lo", "exec_hi", "exec", "m0")

def regs_of(tok):
    tok = tok.strip()
    out = []
    for m in REG_RE.finditer(tok):
        if m.group(1):
            out += [(m.group(1), n) for n in range(int(m.group(2)), int(m.group(3)) + 1)]
        else:
            out.append((m.group(4), int(m.group(5))))
    t = tok.lstrip("-")
    if t in ("vcc", "vcc_lo", "vcc_hi"): out.append(("x", "vcc"))
    if t in ("exec", "exec_lo", "exec_hi"): out.append(("x", "exec"))
    if t == "m0": out.append(("x", "m0"))
    return out

def split_ops(s):
    ops, depth, cur = [], 0, ""
    for ch in s:
        if ch == "[": depth += 1
        if ch == "]": depth -= 1
        if ch == "," and depth == 0:
            ops.append(cur.strip()); cur = ""
        else:
            cur += ch
    if cur.strip(): ops.append(cur.strip())
    return ops

TRANS = ("v_exp_", "v_rcp_", "v_log_", "v_rsq_", "v_sqrt_", "v_sin_", "v_cos_")

class I:
    __slots__ = ("text", "mn", "kind", "reads", "writes", "tag", "cread", "need_vm", "need_lgkm", "raw", "cost")
    def __init__(self, text, tag=None):
        self.text = text; self.tag = tag
        self.need_vm = None; self.need_lgkm = None
        self.cread = []
        t = text.strip()
        if t.endswith(":") or t.startswith(".") or t.startswith(";"):
            self.mn = ""; self.kind = "raw"; self.reads = []; self.writes = []; self.cost = 0
            return
        sp = t.split(None, 1)
        mn = sp[0]; self.mn = mn
        rest = sp[1] if len(sp) > 1 else ""
        ops = split_ops(rest)
        mods = ""
        if ops:
            l = ops[-1].split(None, 1)
            if len(l) > 1 and not ops[-1].startswith("lgkmcnt") and not ops[-1].startswith("vmcnt"):
                ops[-1] = l[0]; mods = l[1]
        R = lambda lst: [r for o in lst for r in regs_of(o)]
        self.cost = 1
        if mn.startswith("v_mfma"):
            self.kind = "mfma"; self.writes = R(ops[:1]); self.reads = R(ops[1:3]); self.cread = R(ops[3:4])
        elif mn.startswith("v_permlane"):
            self.kind = "perm"; self.writes = R(ops[:2]); self.reads = R(ops[:2])
        elif mn.startswith("v_cmp"):
            self.kind = "valu"; self.writes = R(ops[:1]); self.reads = R(ops[1:])
        elif mn.startswith("v_readfirstlane") or mn.startswith("v_readlane"):
            self.kind = "vrfl"; self.writes = R(ops[:1]); self.reads = R(ops[1:])
        elif mn.startswith("v_"):
            self.kind = "trans" if mn.startswith(TRANS) else "valu"
            self.writes = R(ops[:1]); self.reads = R(ops[1:])
            if mn.startswith("v_fmac") or mn.startswith("v_accvgpr_mov"): self.reads += self.writes if mn.startswith("v_fmac") else []
            if self.kind == "trans": self.cost = 2
        elif mn.startswith("ds_read"):
            self.kind = "dsr"; self.writes = R(ops[:1]); self.reads = R(ops[1:])
        elif mn.startswith("ds_write"):
            self.kind = "dsw"; self.writes = []; self.reads = R(ops)
        elif mn.startswith("buffer_load"):
            if re.search(r'\blds\b', mods):
                self.kind = "dma"; self.writes = []; self.reads = R(ops) + [("x", "m0")]
            else:
                self.kind = "vld"; self.writes = R(ops[:1]); self.reads = R(ops[1:])
        elif mn.startswith("buffer_store"):
            self.kind = "vst"; self.writes = []; self.reads = R(ops)
        elif mn in ("s_waitcnt", "s_barrier", "s_nop", "s_endpgm", "s_setprio", "s_sleep"):
            self.kind = mn; self.writes = []; self.reads = []
        elif mn.startswith("s_cbranch") or mn == "s_branch":
            self.kind = "branch"; self.writes = []; self.reads = []
        elif mn.startswith("s_load") or mn.startswith("s_memtime") or mn.startswith("s_memrealtime"):
            self.kind = "smem"; self.writes = R(ops[:1]); self.reads = R(ops[1:])
        elif mn.startswith("s_cmp"):
            self.kind = "salu"; self.writes = []; self.reads = R(ops)
        elif mn.startswith("s_"):
            self.kind = "salu"; self.writes = R(ops[:1]); self.reads = R(ops[1:])
            if "saveexec" in mn: self.writes += [("x", "exec")]
        else:
            raise ValueError("unknown instruction: " + text)
        if mn.startswith("v_cndmask") and len(ops) == 4 and False: pass

class Wait:
    def __init__(self, vm_tag=None, lgkm_all=False, vm_all=False):
        self.vm_tag = vm_tag; self.lgkm_all = lgkm_all; self.vm_all = vm_all
        self.kind = "Wait"; self.cost = 1

class Prog:
    def __init__(self):
        self.items = []
    def e(self, text, tag=None):
        i = I(text, tag); self.items.append(i); return i
    def add(self, item): self.items.append(item)
    def wait(self, vm_tag=None, lgkm_all=False, vm_all=False):
        self.items.append(Wait(vm_tag, lgkm_all, vm_all))

    def finalize(self, verbose=False):
        out = []
        pos = 0
        vw = {}
        tw = {}
        mw = {}
        mc = {}
        sw = {}
        st = {}
        m0w = -100
        vm = []
        vm_issued = 0; vm_done = 0
        vm_tags = {}
        vm_dst = {}
        lg_issued = 0; lg_done = 0
        lg_dst = {}
        smem_pending = False
        stats = dict(nops=0, nop_states=0, waits=0, mfma=0, other=0)
        def emit(text):
            out.append(text)
        for it in self.items:
            need_vm = None; need_lg = None
            if isinstance(it, Wait):
                if it.vm_all: need_vm = vm_issued
                elif it.vm_tag is not None:
                    need_vm = vm_tags[it.vm_tag] + 1
                if it.lgkm_all: need_lg = lg_issued
                touched = []
            else:
                if it.kind == "raw":
                    emit(it.text); continue
                touched = it.reads + it.writes + it.cread
                for r in touched:
                    if r in vm_dst and vm_dst[r] >= vm_done: need_vm = max(need_vm or 0, vm_dst[r] + 1)
                    if r in lg_dst and lg_dst[r] >= lg_done: need_lg = max(need_lg or 0, lg_dst[r] + 1)
                if it.kind in ("vld", "vst", "dma") and vm_issued - vm_done >= 63:
                    need_vm = max(need_vm or 0, vm_issued - 62)
                if it.kind in ("dsr", "dsw") and lg_issued - lg_done >= 15:
                    need_lg = max(need_lg or 0, lg_issued - 14)
            w = []
            if need_vm is not None and need_vm > vm_done:
                n = vm_issued - need_vm
                assert n >= 0
                n = min(n, 63); w.append("vmcnt(%d)" % n); vm_done = max(vm_done, vm_issued - n)
            if need_lg is not None and need_lg > lg_done:
                n = lg_issued - need_lg
                n = min(n, 15); w.append("lgkmcnt(%d)" % n); lg_done = max(lg_done, lg_issued - n)
            if w:
                emit("s_waitcnt " + " ".join(w)); pos += 1; stats["waits"] += 1
            if isinstance(it, Wait): continue
            if it.kind == "s_waitcnt":
                m = re.search(r"vmcnt\((\d+)\)", it.text)
                if m: vm_done = max(vm_done, vm_issued - int(m.group(1)))
                m = re.search(r"lgkmcnt\((\d+)\)", it.text)
                if m: lg_done = max(lg_done, lg_issued - int(m.group(1)))
                emit(it.text); pos += 1; continue
            need = 0
            def req(ppos, n):
                nonlocal need
                d = pos - ppos - 1
                if d < n: need = max(need, n - d)
            k = it.kind
            if k == "mfma":
                for r in it.reads:
                    if r in vw: req(vw[r], 2)
                    if r in mw: req(mw[r][0], 8)
                for r in it.cread:
                    if r in vw: req(vw[r], 2)
                    if r in mw and mw[r][1] != tuple(it.cread): req(mw[r][0], 6)
                for r in it.writes:
                    if r in mw and mw[r][1] != tuple(it.writes): req(mw[r][0], 8)
            elif k in ("valu", "trans", "perm", "vrfl"):
                for r in it.reads:
                    if r in mw: req(mw[r][0], 8)
                    if r in tw: req(tw[r], 1)
                    if k == "perm" and r in vw: req(vw[r], 2)
                    if k == "vrfl" and r in vw: req(vw[r], 1)
                    if r in sw: req(sw[r], 2)
                if it.mn.startswith("v_cndmask") and not it.text.rstrip().endswith("]"):
                    if ("x", "vcc") in sw: req(sw[("x", "vcc")], 2)
                for r in it.writes:
                    if r in mw: req(mw[r][0], 8)
                    if r in mc: req(mc[r], 3)
                    if r in st: req(st[r], 2)
            elif k in ("dsr", "dsw", "vld", "vst", "dma"):
                for r in it.reads:
                    if r in mw: req(mw[r][0], 8)
                    if r in tw: req(tw[r], 1)
                    if r in sw: req(sw[r], 5)
                for r in it.writes:
                    if r in mw: req(mw[r][0], 8)
                if k == "dma": req(m0w, 1)
            elif k in ("salu", "smem"):
                for r in it.reads:
                    if r in sw: req(sw[r], 4)
            if need:
                stats["nops"] += 1; stats["nop_states"] += need
                if verbose: emit("; hazard nop before: " + it.text)
                n = need
                while n > 0:
                    c = min(n, 16); emit("s_nop %d" % (c - 1)); pos += c; n -= c
            emit(it.text)
            if k == "s_nop":
                pos += int(it.text.split()[1]) + 1; continue
            if k == "mfma":
                stats["mfma"] += 1
                t = tuple(it.writes)
                for r in it.writes:
                    mw[r] = (pos, t); vw.pop(r, None); tw.pop(r, None)
                for r in it.cread: mc[r] = pos
            else:
                stats["other"] += 1
            if k in ("valu", "trans", "perm"):
                for r in it.writes:
                    if r[0] in ("s", "x"): sw[r] = pos
                    else:
                        vw[r] = pos; mw.pop(r, None)
                        if k == "trans": tw[r] = pos
                        else: tw.pop(r, None)
            if k == "vrfl":
                for r in it.writes: sw[r] = pos
            if k == "salu":
                for r in it.writes:
                    sw.pop(r, None)
                    if r == ("x", "m0"): m0w = pos
            if k in ("vld", "vst", "dma"):
                if it.tag is not None: vm_tags[it.tag] = vm_issued
                for r in it.writes:
                    vm_dst[r] = vm_issued; vw.pop(r, None); mw.pop(r, None); tw.pop(r, None)
                if k == "vst" and "x4" in it.mn:
                    for r in it.reads[:4]: st[r] = pos
                vm_issued += 1
            if k in ("dsr", "dsw"):
                for r in it.writes:
                    lg_dst[r] = lg_issued; vw.pop(r, None); mw.pop(r, None); tw.pop(r, None)
                lg_issued += 1
            pos += 1
        self.stats = stats
        return out
```

```python
import sys, struct, argparse
from asmlib import Prog, I, Wait

XBYTES = 109734912
WSBYTES = 438939648
WQKV_BYTES = 384*1152*2
WO_BYTES = 384*384*2
NWG = 243
CHUNK = 24576
ROWB = 290304
OFF48 = 6*ROWB + 6*768
SCALE_LOG2E = (384.0 ** -0.5) * 1.4426950408889634
def f2u(x): return struct.unpack("<I", struct.pack("<f", x))[0]

def vr(b, n=4): return "v[%d:%d]" % (b, b+n-1) if n > 1 else "v%d" % b
def ar(b, n=4): return "a[%d:%d]" % (b, b+n-1) if n > 1 else "a%d" % b

def srd(p, d, base, nbytes):
    p.e("s_mov_b32 s%d, s%d" % (d, base)); p.e("s_mov_b32 s%d, s%d" % (d+1, base+1))
    p.e("s_mov_b32 s%d, %d" % (d+2, nbytes)); p.e("s_mov_b32 s%d, 0x20000" % (d+3))

def kdesc(name, vgpr, accum, sgpr=96):
    return ['.section .rodata,"a"', ".p2align 6", ".amdhsa_kernel %s" % name,
            "  .amdhsa_next_free_vgpr %d" % vgpr, "  .amdhsa_next_free_sgpr %d" % sgpr,
            "  .amdhsa_accum_offset %d" % accum, "  .amdhsa_group_segment_fixed_size 0",
            "  .amdhsa_kernarg_size 48", "  .amdhsa_user_sgpr_count 2",
            "  .amdhsa_user_sgpr_kernarg_segment_ptr 1", "  .amdhsa_system_sgpr_workgroup_id_x 1",
            "  .amdhsa_float_denorm_mode_32 3",
            ".end_amdhsa_kernel", ".text"]

def gen_pre(name="prep_kernel"):
    p = Prog()
    e = p.e
    e("s_cmp_ge_u32 s2, 576"); e("s_cbranch_scc1 LP_end")
    e("s_load_dwordx2 s[4:5], s[0:1], 8")
    e("s_load_dwordx2 s[6:7], s[0:1], 16")
    e("s_load_dwordx2 s[8:9], s[0:1], 40")
    e("s_cmp_ge_u32 s2, 288"); e("s_cselect_b32 s20, 1, 0")
    e("s_mul_i32 s21, s20, 288"); e("s_sub_u32 s21, s2, s21")
    e("s_mul_i32 s22, s21, 5462"); e("s_lshr_b32 s22, s22, 16")
    e("s_mul_i32 s23, s22, 12"); e("s_sub_u32 s23, s21, s23")
    e("v_and_b32 v1, 15, v0")
    e("v_lshrrev_b32 v2, 4, v0")
    e("v_lshrrev_b32 v3, 2, v1")
    e("v_and_b32 v4, 3, v1")
    e("v_lshl_add_u32 v3, v3, 3, v4")
    e("s_lshl_b32 s24, s23, 5")
    e("v_add_u32 v5, s24, v3")
    e("v_mul_u32_u24 v5, 2304, v5")
    e("v_lshlrev_b32 v6, 4, v2")
    e("v_add_u32 v5, v5, v6")
    e("s_mul_i32 s25, s20, 1536")
    e("v_add_u32 v5, s25, v5")
    e("s_waitcnt lgkmcnt(0)")
    srd(p, 12, 4, WQKV_BYTES); srd(p, 16, 6, WO_BYTES); srd(p, 28, 8, 2*294912)
    e("s_mov_b32 s26, 9216")
    A0, A1, B = 16, 64, 112
    RAW = 160
    for s in range(12):
        e("buffer_load_dwordx4 %s, v5, s[12:15], 0 offen offset:%d" % (vr(A0+4*s), s*64))
        e("buffer_load_dwordx4 %s, v5, s[12:15], s26 offen offset:%d" % (vr(A1+4*s), s*64))
    e("s_cmp_eq_u32 s20, 1"); e("s_cbranch_scc1 LP_mat1")
    lines0 = p.items;
    e("s_lshr_b32 s27, s22, 1"); e("s_lshl_b32 s27, s27, 5")
    e("s_and_b32 s24, s22, 1"); e("s_lshl_b32 s24, s24, 2"); e("s_add_u32 s27, s27, s24")
    e("v_add_u32 v7, s27, v3"); e("v_mul_u32_u24 v7, 2304, v7"); e("v_add_u32 v7, v7, v6"); e("v_add_u32 v7, 768, v7")
    for s in range(12):
        e("buffer_load_dwordx4 %s, v7, s[12:15], 0 offen offset:%d" % (vr(B+4*s), s*64))
    e("s_waitcnt vmcnt(0)")
    e("s_branch LP_mm")
    e("LP_mat1:")
    e("s_lshr_b32 s27, s22, 3"); e("s_lshl_b32 s27, s27, 7"); e("s_and_b32 s24, s22, 7"); e("s_add_u32 s27, s27, s24")
    e("v_lshlrev_b32 v7, 3, v1"); e("v_add_u32 v7, s27, v7"); e("v_lshlrev_b32 v7, 1, v7")
    e("v_mul_u32_u24 v8, 6144, v2"); e("v_add_u32 v7, v7, v8")
    for half in range(2):
        for s in range(6*half, 6*half+6):
            for jh in range(2):
                e("s_mov_b32 s24, %d" % (s*24576 + jh*3072))
                for j in range(4):
                    e("buffer_load_ushort v%d, v7, s[16:19], s24 offen offset:%d" % (RAW + (s-6*half)*8 + jh*4 + j, j*768))
        e("s_waitcnt vmcnt(0)")
        for s in range(6*half, 6*half+6):
            for q in range(4):
                r = RAW + (s-6*half)*8 + 2*q
                e("v_lshl_or_b32 v%d, v%d, 16, v%d" % (B+4*s+q, r+1, r))
    e("s_nop 1")
    e("LP_mm:")
    for s in range(12):
        c0 = "0" if s == 0 else vr(8); c1 = "0" if s == 0 else vr(12)
        e("v_mfma_f32_16x16x32_bf16 %s, %s, %s, %s" % (vr(8), vr(A0+4*s), vr(B+4*s), c0))
        e("v_mfma_f32_16x16x32_bf16 %s, %s, %s, %s" % (vr(12), vr(A1+4*s), vr(B+4*s), c1))
    e("s_nop 7")
    e("v_cvt_pk_bf16_f32 v16, v8, v9"); e("v_cvt_pk_bf16_f32 v17, v10, v11")
    e("v_cvt_pk_bf16_f32 v18, v12, v13"); e("v_cvt_pk_bf16_f32 v19, v14, v15")
    e("s_lshl_b32 s24, s2, 10"); e("v_lshlrev_b32 v1, 4, v0")
    e("buffer_store_dwordx4 v[16:19], v1, s[28:31], s24 offen")
    e("LP_end:"); e("s_endpgm")
    lines = [it.text for it in p.items]
    hdr = [".globl %s" % name, ".p2align 8", ".type %s,@function" % name, "%s:" % name]
    return hdr + lines, kdesc(name, 256, 256, 40)

class Cfg:
    D = 2
    NSLOT = 5
    stamps = False
    nt_x = ""
    nt_o = ""
    rounds = 3
    dbg = None

LDS_X48 = None
def gen_main(cfg, name="standalone__swin_window_attn__vision_kernel"):
    NS = cfg.NSLOT
    X48B = NS*CHUNK; T48B = X48B + 12288; V48B = T48B + 12288; LDSZ = V48B + 12288
    S = lambda qt, j: 16*qt + j
    ACC = lambda h, t: 64 + (h*3+t)*4
    VB = lambda b, h, s: 88 + b*16 + h*8 + s*4
    TB = lambda t: 88 + 4*t
    FX48, FT48 = 100, 104
    PACK = lambda q: 120 + 4*q
    WF = lambda q, j: 172 + (q & 1)*16 + 4*j
    XOV = 204
    VOX = lambda t: 236 + t
    VOS = lambda q: 239 + q
    VDMA, VW, VXT, VV48 = 251, 252, 253, 254
    def X(bank, t, k):
        idx = t*12 + k
        if bank == 0: return ar(4*idx)
        return ar(144 + 4*idx) if idx < 28 else vr(XOV + 4*(idx-28))
    S_X, S_O, S_W = 4, 8, 12
    sWV, sW6 = 16, 17
    sWIN = lambda r: 20 + r
    sDO, sL48, sC, sNC, sT = 24, 25, 26, 27, 28
    sLW = 29
    p = Prog(); e = p.e
    def mfma(d, a, b, c): return I("v_mfma_f32_16x16x32_bf16 %s, %s, %s, %s" % (d, a, b, c))

    e("s_cmp_ge_u32 s2, %d" % NWG); e("s_cbranch_scc1 L_end")
    e("s_load_dwordx2 s[36:37], s[0:1], 0"); e("s_load_dwordx2 s[38:39], s[0:1], 24"); e("s_load_dwordx2 s[40:41], s[0:1], 40")
    T0 = 120
    e("v_lshrrev_b32 v%d, 6, v0" % T0)
    e("v_readfirstlane_b32 s%d, v%d" % (sWV, T0))
    e("v_and_b32 v%d, 63, v0" % (T0+1))
    LANE, LI, LG = T0+1, T0+2, T0+3
    e("v_and_b32 v%d, 15, v%d" % (LI, LANE))
    e("v_lshrrev_b32 v%d, 4, v%d" % (LG, LANE))
    e("s_mul_i32 s%d, s%d, 6144" % (sW6, sWV))
    e("s_waitcnt lgkmcnt(0)")
    srd(p, S_X, 36, XBYTES); srd(p, S_O, 38, XBYTES); srd(p, S_W, 40, 2*294912)
    for r in range(3):
        e("s_mul_i32 s30, s2, 12"); e("s_add_u32 s30, s30, s%d" % sWV)
        if r: e("s_add_u32 s30, s30, %d" % (4*r))
        e("s_mul_hi_u32 s31, s30, 79536432")
        e("s_mul_i32 s32, s31, 54"); e("s_sub_u32 s32, s30, s32")
        e("s_mul_i32 s31, s31, %d" % (7*ROWB)); e("s_mul_i32 s32, s32, 5376")
        e("s_add_u32 s%d, s31, s32" % sWIN(r))
    e("s_mov_b32 s%d, 0x%08x" % (sC, f2u(SCALE_LOG2E))); e("s_mov_b32 s%d, 0x%08x" % (sNC, f2u(-SCALE_LOG2E)))
    e("s_mov_b32 vcc_lo, 0x00010001"); e("s_mov_b32 vcc_hi, 0x00010001")
    def tokoff(dst, tok, tmp):
        e("v_mul_u32_u24 v%d, 37, v%d" % (tmp, tok)); e("v_lshrrev_b32 v%d, 8, v%d" % (tmp, tmp))
        e("v_mul_u32_u24 v%d, %d, v%d" % (tmp, ROWB - 7*768, tmp))
        e("v_mul_u32_u24 v%d, 768, v%d" % (dst, tok)); e("v_add_u32 v%d, v%d, v%d" % (dst, dst, tmp))
    TA, TBm, TC = T0+4, T0+5, T0+6
    for t in range(3):
        e("v_add_u32 v%d, %d, v%d" % (TA, 16*t, LI)); tokoff(VOX(t), TA, TBm)
        e("v_lshl_add_u32 v%d, v%d, 4, v%d" % (VOX(t), LG, VOX(t)))
    for qt in range(3):
        for r in range(4):
            e("v_lshlrev_b32 v%d, 2, v%d" % (TA, LG)); e("v_add_u32 v%d, %d, v%d" % (TA, 16*qt + r, TA))
            tokoff(VOS(4*qt+r), TA, TBm)
            e("v_lshl_add_u32 v%d, v%d, 4, v%d" % (VOS(4*qt+r), LI, VOS(4*qt+r)))
    e("v_lshlrev_b32 v%d, 4, v%d" % (VW, LANE))
    e("v_add_u32 v%d, s%d, v%d" % (VDMA, sW6, VW))
    e("s_mul_i32 s30, s%d, 192" % sWV)
    e("s_mul_i32 s33, s2, 12")
    for q in range(3):
        P_, Wn, Wy = TA, TBm, TC
        e("v_add_u32 v%d, s30, v%d" % (P_, LANE))
        if q: e("v_add_u32 v%d, %d, v%d" % (P_, 64*q, P_))
        e("v_mul_u32_u24 v%d, 1366, v%d" % (Wn, P_)); e("v_lshrrev_b32 v%d, 16, v%d" % (Wn, Wn))
        e("v_mul_u32_u24 v%d, 48, v%d" % (Wy, Wn)); e("v_sub_u32 v%d, v%d, v%d" % (P_, P_, Wy))
        e("v_lshlrev_b32 v%d, 4, v%d" % (P_, P_))
        e("v_cmp_gt_u32 s[34:35], 12, v%d" % Wn)
        e("v_add_u32 v%d, s33, v%d" % (Wn, Wn))
        e("v_mul_u32_u24 v%d, 19419, v%d" % (Wy, Wn)); e("v_lshrrev_b32 v%d, 20, v%d" % (Wy, Wy))
        D_ = T0+8+q
        e("v_mul_u32_u24 v%d, 54, v%d" % (D_, Wy)); e("v_sub_u32 v%d, v%d, v%d" % (Wn, Wn, D_))
        e("v_mul_u32_u24 v%d, %d, v%d" % (Wy, 7*ROWB, Wy)); e("v_mul_u32_u24 v%d, 5376, v%d" % (Wn, Wn))
        e("v_add_u32 v%d, v%d, v%d" % (Wy, Wy, Wn)); e("v_add_u32 v%d, v%d, v%d" % (Wy, Wy, P_))
        e("v_add_u32 v%d, %d, v%d" % (Wy, OFF48, Wy))
        e("v_mov_b32 v%d, 0x7fff0000" % D_)
        e("v_cndmask_b32 v%d, v%d, v%d, s[34:35]" % (D_, D_, Wy))
    e("s_mul_i32 s30, s%d, 3072" % sWV)
    for q in range(3):
        e("s_add_u32 m0, s30, %d" % (X48B + q*1024))
        e("buffer_load_dwordx4 v%d, s[%d:%d], 0 offen lds" % (T0+8+q, S_X, S_X+3), tag="XL")
    e("s_mul_i32 s30, s%d, 768" % sWV)
    e("v_lshlrev_b32 v%d, 4, v%d" % (TA, LG))
    e("v_add_u32 v%d, %d, v%d" % (TBm, X48B + 12*768, TA))
    e("v_add_u32 v%d, %d, v%d" % (TA, X48B, TA)); e("v_add_u32 v%d, s30, v%d" % (TA, TA))
    e("v_cndmask_b32 v%d, v%d, v%d, vcc" % (VXT, TBm, TA))
    e("v_lshlrev_b32 v%d, 1, v%d" % (TA, LI)); e("v_add_u32 v%d, %d, v%d" % (TA, V48B, TA)); e("v_add_u32 v%d, s30, v%d" % (VV48, TA))
    AXL, ATW, AVW = T0+48, T0+49, T0+50
    e("v_mul_u32_u24 v%d, 768, v%d" % (TA, LI)); e("v_lshl_add_u32 v%d, v%d, 4, v%d" % (TA, LG, TA))
    e("v_add_u32 v%d, %d, v%d" % (AXL, X48B, TA))
    e("s_mul_i32 s30, s%d, 192" % sWV)
    e("v_add_u32 v%d, %d, v%d" % (TA, T48B, TA)); e("v_add_u32 v%d, s30, v%d" % (ATW, TA))
    e("v_mul_u32_u24 v%d, 3072, v%d" % (TA, LG)); e("v_lshl_add_u32 v%d, v%d, 1, v%d" % (TA, LI, TA))
    e("v_add_u32 v%d, %d, v%d" % (TA, V48B, TA)); e("v_add_u32 v%d, s30, v%d" % (AVW, TA))

    def dma_chunk_instrs(G):
        cc = G % 24; slot = G % NS
        g = []
        for i in range(6):
            pre = []
            if i in (0, 4):
                pre.append(I("s_add_u32 m0, s%d, %d" % (sW6, slot*CHUNK + (4096 if i == 4 else 0))))
                pre.append(I("s_mov_b32 s%d, %d" % (sDO, cc*CHUNK + (4096 if i == 4 else 0))))
            ld = I("buffer_load_dwordx4 v%d, s[%d:%d], s%d offen offset:%d lds" % (VDMA, S_W, S_W+3, sDO, (i % 4)*1024), tag=("W", G))
            g.append((pre, ld))
        return g
    for G in range(NS):
        for pre, ld in dma_chunk_instrs(G):
            for x in pre: p.add(x)
            p.add(ld)
    def xload(bank, r, t, k):
        return I("buffer_load_dwordx4 %s, v%d, s[%d:%d], s%d offen offset:%d %s" % (X(bank, t, k), VOX(t), S_X, S_X+3, sWIN(r), k*64, cfg.nt_x))
    for t in range(3):
        for k in range(12): p.add(xload(0, 0, t, k))
    p.wait(vm_tag="XL"); e("s_barrier")
    XL = lambda k: vr(T0 + 4*k)
    for k in range(12):
        e("ds_read_b128 %s, v%d offset:%d" % (XL(k), AXL, k*64))
    e("s_mul_i32 s%d, s%d, %d" % (sLW, sWV, 73728 - 6144))
    def wb(j): return X(1, j // 12, j % 12)
    def wload(mat, j, buf):
        out = []
        if j % 4 == 0:
            out.append(I("s_add_u32 s%d, s%d, %d" % (sT, sLW, mat*294912 + (j//4)*4096)))
        out.append(I("buffer_load_dwordx4 %s, v%d, s[%d:%d], s%d offen offset:%d" % (wb(buf), VDMA, S_W, S_W+3, sT, (j % 4)*1024)))
        return out
    NB = 12
    batches = [(mat, b) for mat in range(2) for b in range(6)]
    def issue_batch(bi):
        mat, b = batches[bi]
        for j in range(12):
            for x in wload(mat, b*12 + j, (bi % 3)*12 + j): p.add(x)
    for bi in range(3): issue_batch(bi)
    for bi, (mat, b) in enumerate(batches):
        h = b & 1; q = b >> 1
        acc = vr(ACC(h, 0))
        for k in range(12):
            c = "0" if k == 0 else acc
            if mat == 0: p.add(mfma(acc, wb((bi % 3)*12 + k), XL(k), c))
            else: p.add(mfma(acc, XL(k), wb((bi % 3)*12 + k), c))
        if bi + 3 < len(batches): issue_batch(bi + 3)
        a0 = ACC(h, 0)
        if mat == 0:
            e("v_cvt_pk_bf16_f32 v%d, v%d, v%d" % (88 + 2*h, a0, a0+1)); e("v_cvt_pk_bf16_f32 v%d, v%d, v%d" % (89 + 2*h, a0+2, a0+3))
            if h == 1: e("ds_write_b128 v%d, %s offset:%d" % (ATW, vr(88), q*64))
        else:
            e("v_cvt_pk_bf16_f32 v%d, v%d, v%d" % (92, a0, a0+1)); e("v_cvt_pk_bf16_f32 v%d, v%d, v%d" % (93, a0+2, a0+3))
            e("ds_write_b16 v%d, v92 offset:%d" % (AVW, b*32)); e("ds_write_b16_d16_hi v%d, v92 offset:%d" % (AVW, 768 + b*32))
            e("ds_write_b16 v%d, v93 offset:%d" % (AVW, 1536 + b*32)); e("ds_write_b16_d16_hi v%d, v93 offset:%d" % (AVW, 2304 + b*32))
    p.wait(lgkm_all=True, vm_tag=("W", 0)); e("s_barrier")
    if cfg.stamps:
        e("s_memtime s[44:45]"); e("s_memrealtime s[46:47]"); e("s_waitcnt lgkmcnt(0)")

    main = []
    gaps = {}
    load = {}
    def place(pos, items, front=False):
        if not isinstance(items, list): items = [items]
        g = gaps.setdefault(pos, [])
        if front: g[0:0] = items
        else: g.extend(items)
        load[pos] = load.get(pos, 0) + sum(getattr(x, "cost", 1) for x in items)
    def wread(G, q, j):
        h, kg = q // 3, q % 3
        return I("ds_read_b128 %s, v%d offset:%d" % (vr(WF(q, j)), VW, (h*12 + kg*4 + j)*1024))
    place(-1, [wread(0, 0, j) for j in range(4)])
    NCH = 24*cfg.rounds
    pend_pack = None
    fifo = []
    fifo_marks = []
    def pv_mfmas(r, c):
        b = c % cfg.D
        out = []
        for h in range(2):
            for qt in range(4):
                d = vr(S(qt, 8 + 4*h))
                out.append(mfma(d, vr(S(qt, 0)), vr(VB(b, h, 0)), "0"))
                out.append(mfma(d, vr(S(qt, 4)), vr(VB(b, h, 1)), d))
        return out
    def pack_and_store(r, c, base):
        pp = c % 4; a = c // 4
        items = []
        for qt in range(4):
            for rr in range(4 if qt < 3 else 1):
                items.append((qt, I("v_cvt_pk_bf16_f32 v%d, v%d, v%d" % (PACK(4*qt+rr) + pp, S(qt, 8+rr), S(qt, 12+rr)))))
        pos = base + 2
        n = 0
        for qt, ins in items:
            pos = max(pos, base + 2 + 2*qt)
            place(pos, ins); n += 1
            if n % 2 == 0: pos += 1
        if pp == 3:
            pos += 3
            for q in range(12):
                place(pos, I("buffer_store_dwordx4 %s, v%d, s[%d:%d], s%d offen offset:%d %s" % (vr(PACK(q)), VOS(q), S_O, S_O+3, sWIN(r), a*256, cfg.nt_o)))
                pos += 4
            place(pos, [I("s_add_u32 s%d, s%d, %d" % (sL48, sWIN(r), OFF48)), I("s_sub_u32 s%d, s%d, s%d" % (sL48, sL48, sW6)),
                        I("s_mov_b64 exec, 0xffff"),
                        I("buffer_store_dwordx4 %s, v%d, s[%d:%d], s%d offen offset:%d %s" % (vr(PACK(12)), VDMA, S_O, S_O+3, sL48, a*256, cfg.nt_o)),
                        I("s_mov_b64 exec, -1")])
        return pos
    def softmax_stream(base_by_qt):
        seq = []
        order = [3, 0, 1, 2]
        for n, qt in enumerate(order):
            t0, t1 = PACK(0) + 2*n, PACK(0) + 2*n + 1
            s = lambda j: S(qt, j)
            L = []
            L.append([I("s_mov_b32 exec_lo, 0xffff0000"), I("v_mov_b32 v%d, 0xff800000" % s(12)), I("s_mov_b32 exec_lo, -1")])
            L.append(I("v_max3_f32 v%d, v%d, v%d, v%d" % (t0, s(0), s(1), s(2))))
            for j in range(3, 13, 2): L.append(I("v_max3_f32 v%d, v%d, v%d, v%d" % (t0, t0, s(j), s(j+1))))
            for sw in ("32", "16"):
                L.append(I("v_mov_b32 v%d, v%d" % (t1, t0)))
                L.append(I("v_permlane%s_swap_b32 v%d, v%d" % (sw, t0, t1)))
                L.append(I("v_max_f32 v%d, v%d, v%d" % (t0, t0, t1)))
            L.append(I("v_mul_f32 v%d, s%d, v%d" % (t0, sNC, t0)))
            for j in range(13): L.append(I("v_fma_f32 v%d, v%d, s%d, v%d" % (s(j), s(j), sC, t0)))
            for j in range(13): L.append(I("v_exp_f32 v%d, v%d" % (s(j), s(j))))
            L.append(I("v_add_f32 v%d, v%d, v%d" % (t0, s(0), s(1))))
            for j in range(2, 13): L.append(I("v_add_f32 v%d, v%d, v%d" % (t0, t0, s(j))))
            for sw in ("32", "16"):
                L.append(I("v_mov_b32 v%d, v%d" % (t1, t0)))
                L.append(I("v_permlane%s_swap_b32 v%d, v%d" % (sw, t0, t1)))
                L.append(I("v_add_f32 v%d, v%d, v%d" % (t0, t0, t1)))
            L.append(I("v_rcp_f32 v%d, v%d" % (t0, t0)))
            if qt == 3: L.append(I("v_cndmask_b32 v%d, 0, v%d, vcc" % (t0, t0)))
            for j in range(13): L.append(I("v_mul_f32 v%d, v%d, v%d" % (s(j), s(j), t0)))
            for j in range(6): L.append(I("v_cvt_pk_bf16_f32 v%d, v%d, v%d" % (s(j), s(2*j), s(2*j+1))))
            L.append(I("v_cvt_pk_bf16_f32 v%d, v%d, 0" % (s(6), s(12))))
            L.append(I("v_mov_b32 v%d, 0" % s(7)))
            seq.append((base_by_qt[qt], L))
        return seq

    for G in range(NCH):
        r, cc = G // 24, G % 24
        bank = r & 1
        ph1 = cc < 12
        m = cc if ph1 else cc - 12
        base = len(main)
        inner_pv = {}
        tail_pv = None
        if not ph1:
            D = cfg.D
            if D == 2:
                if m == 0: tail_pv = None
                elif m == 1: tail_pv = 0
                elif m == 2: inner_pv = {1: 1}; tail_pv = 2
                else: tail_pv = m
            elif D == 3:
                if m < 2: tail_pv = None
                elif m == 2: tail_pv = 0
                elif m == 3: inner_pv = {1: 1, 3: 2}; tail_pv = 3
                else: tail_pv = m
        gstart = {}
        lastpos = {}
        for q in range(6):
            h, kg = q // 3, q % 3
            gstart[q] = len(main)
            for t in range(3):
                d = vr(ACC(h, t))
                for j in range(4):
                    k = kg*4 + j
                    c = "0" if k == 0 else d
                    if ph1: main.append(mfma(d, vr(WF(q, j)), X(bank, t, k), c))
                    else: main.append(mfma(d, X(bank, t, k), vr(WF(q, j)), c))
                if kg == 2: lastpos[(h, t)] = len(main) - 1
            if q in inner_pv:
                main.extend(pv_mfmas(r, inner_pv[q]))
                pack_and_store(r, inner_pv[q], len(main) - 1)
        for q in range(1, 6):
            for j in range(4): place(gstart[q-1] + 2*j, wread(G, q, j))
        bpos = gstart[5] - 1
        if G + 1 < NCH:
            nslot, cslot = (G+1) % NS, G % NS
            items = [Wait(vm_tag=("W", G+1), lgkm_all=True), I("s_barrier"),
                     I("v_add_u32 v%d, %d, v%d" % (VW, ((nslot - cslot)*CHUNK) & 0xffffffff, VW))]
            place(bpos, items)
            for j in range(4): place(gstart[5] + 1 + 2*j, wread(G+1, 0, j))
            if G + NS < NCH:
                pos = gstart[5] + 2
                for pre, ld in dma_chunk_instrs(G + NS):
                    if pre: place(pos, pre); pos += 2
                    place(pos, ld); pos += 4
        if ph1:
            if r + 1 < cfg.rounds:
                for i3 in range(3):
                    idx = m*3 + i3
                    place(gstart[1] + 1 + 16*i3, xload(bank ^ 1, r+1, idx // 12, idx % 12))
            place(gstart[1] + 5, I("ds_read_b128 %s, v%d offset:%d" % (vr(FX48), VXT, m*64)))
            place(gstart[1] + 9, I("ds_read_b128 %s, v%d offset:%d" % (vr(FT48), VXT, 12288 + m*64)))
            for h in range(2):
                for t in range(3):
                    a0 = ACC(h, t)
                    place(lastpos[(h, t)] + 8, [I("v_cvt_pk_bf16_f32 v%d, v%d, v%d" % (TB(t) + 2*h, a0, a0+1)),
                                                I("v_cvt_pk_bf16_f32 v%d, v%d, v%d" % (TB(t) + 2*h + 1, a0+2, a0+3))])
            sbase = {}
            for qt in (3, 0, 1, 2):
                for kt in range(4):
                    d = vr(S(qt, 4*kt))
                    a = X(bank, kt, m) if kt < 3 else vr(FX48)
                    b = vr(TB(qt)) if qt < 3 else vr(FT48)
                    main.append(mfma(d, a, b, "0" if m == 0 else d))
                sbase[qt] = len(main) - 1 + 8
            if m == 11:
                fifo = softmax_stream(sbase); fifo_start = len(main)
        else:
            b = m % cfg.D
            for h in range(2):
                place(gstart[2] + 1 + 4*h, I("ds_read_u16 v%d, v%d offset:%d" % (VB(b, h, 1) + 2, VV48, (2*m + h)*32)))
                if m < cfg.D: place(gstart[2] + 3 + 4*h, I("v_mov_b32 v%d, 0" % (VB(b, h, 1) + 3)))
                for t in range(3):
                    a0 = ACC(h, t); dst = VB(b, h, 0) + 2*t
                    place(lastpos[(h, t)] + 8, [I("v_cvt_pk_bf16_f32 v%d, v%d, v%d" % (dst, a0, a0+1)),
                                                I("v_cvt_pk_bf16_f32 v%d, v%d, v%d" % (dst+1, a0+2, a0+3))])
            if tail_pv is not None:
                pv_start = len(main)
                main.extend(pv_mfmas(r, tail_pv))
                if tail_pv == 0:
                    pos = fifo_start
                    for epos, L in fifo:
                        pos = max(pos, epos)
                        for x in L:
                            xs = x if isinstance(x, list) else [x]
                            cost = sum(y.cost for y in xs)
                            while pos < pv_start - 1 and load.get(pos, 0) + cost > 2 and not (cost > 2 and load.get(pos, 0) == 0):
                                pos += 1
                            place(min(pos, pv_start - 1), xs)
                    fifo = []
                last = len(main) - 1
                pack_and_store(r, tail_pv, last)
            if m == 11 and r + 1 < cfg.rounds:
                place(len(main) - 1, [I("s_mov_b32 exec_lo, 0x00010001"), I("s_mov_b32 exec_hi, 0x00010001"),
                                      I("v_add_u32 v%d, 3072, v%d" % (VXT, VXT)), I("s_mov_b64 exec, -1"),
                                      I("v_add_u32 v%d, 3072, v%d" % (VV48, VV48))])
    for x in gaps.get(-1, []): p.add(x)
    N = len(main)
    for i, mf in enumerate(main):
        p.add(mf)
        for x in gaps.get(i, []): p.add(x)
    for i in range(N, max(gaps) + 1):
        for x in gaps.get(i, []): p.add(x)
    if cfg.stamps:
        e("s_memtime s[48:49]"); e("s_memrealtime s[50:51]"); e("s_waitcnt lgkmcnt(0) vmcnt(0)")
        e("s_load_dwordx2 s[40:41], s[0:1], 40"); e("s_waitcnt lgkmcnt(0)")
        srd(p, 52, 40, WSBYTES)
        e("s_lshl_b32 s30, s2, 2"); e("s_add_u32 s30, s30, s%d" % sWV); e("s_lshl_b32 s30, s30, 5"); e("s_add_u32 s30, s30, %d" % (WSBYTES - (4 << 20)))
        for i in range(8): e("v_mov_b32 v%d, s%d" % (i, 44+i))
        e("v_mov_b32 v8, 0"); e("s_mov_b64 exec, 1")
        e("buffer_store_dwordx4 v[0:3], v8, s[52:55], s30 offen"); e("buffer_store_dwordx4 v[4:7], v8, s[52:55], s30 offen offset:16")
    e("L_end:"); e("s_endpgm")
    lines = p.finalize()
    cfg.stats = p.stats
    hdr = [".globl %s" % name, ".p2align 8", ".type %s,@function" % name, "%s:" % name]
    return hdr + lines, kdesc(name, 512, 256, 96), LDSZ

def build(cfg, path):
    pre, pre_d = gen_pre()
    main, main_d, ldsz = gen_main(cfg)
    head = ["; Swin window attention (7x7 windows, C=384), two launches:",
            ";   prep_kernel : A' = Wq Wk^T and B' = Wv Wo as bf16 MFMA fragments in d_ws",
            ";   main kernel : one window per wave and round; S = (x A') x^T, P = softmax(S/sqrt(C)), out = P (x B')",
            "; @launch kernel=prep_kernel grid=(576,1,1) block=(64,1,1) lds=0",
            "; @launch kernel=standalone__swin_window_attn__vision_kernel grid=(%d,1,1) block=(256,1,1) lds=%d" % (NWG, ldsz),
            '.amdgcn_target "amdgcn-amd-amdhsa--gfx950"', ".text"]
    txt = "\n".join(head + pre + pre_d + main + main_d) + "\n"
    open(path, "w").write(txt)
    print(path, "bytes", len(txt), "stats", cfg.stats)

if __name__ == "__main__":
    ap = argparse.ArgumentParser()
    ap.add_argument("out")
    ap.add_argument("--stamps", action="store_true")
    ap.add_argument("-D", type=int, default=2)
    ap.add_argument("--ntx", default=""); ap.add_argument("--nto", default="")
    a = ap.parse_args()
    c = Cfg(); c.stamps = a.stamps; c.D = a.D; c.nt_x = a.ntx; c.nt_o = a.nto
    build(c, a.out)
```
